```python
import torch

def _softmax(x, axis=-1):
    return torch.softmax(x, dim=axis)

def _gelu(x):
    return torch.nn.functional.gelu(x, approximate='tanh')

def _silu(x):
    return torch.nn.functional.silu(x)

def _sigmoid(x):
    return torch.sigmoid(x)

def _layernorm(x, axis=-1, eps=1e-05):
    m = x.mean(dim=axis, keepdim=True)
    v = x.var(dim=axis, keepdim=True, unbiased=False)
    return (x - m) / torch.sqrt(v + eps)

def _scatter_add(tgt, idx, src, axis=0):
    return tgt.clone().index_add_(axis, idx, src)

def _segment_sum(src, seg, n):
    out = torch.zeros((n,) + src.shape[1:], dtype=src.dtype)
    return out.index_add_(0, seg, src)

def _pad(x, pw):
    flat = tuple((v for pair in reversed(pw) for v in pair))
    return torch.nn.functional.pad(x, flat)
kernel_name = 'gated_mix__compressed_kv_cla__mixer_gmlp__prompt'

def setup_inputs():

    _w = lambda a: (lambda t: t.to(torch.bfloat16) if t.is_floating_point() else t)(torch.as_tensor(a))

    def _A_setup():
        B, H, Sq, Sk, D, M = (1, 32, 2048, 2048, 128, 512)
        Dc = 4 * D
        return {'x': _w((lambda *s: torch.randn(*s, dtype=torch.bfloat16) * 0.05)(B, Sq, M)), 'c_kv': _w((lambda *s: torch.randn(*s, dtype=torch.bfloat16) * 0.8)(B, Sk, Dc)), 'w_q': _w((lambda *s: torch.randn(*s, dtype=torch.bfloat16) * 6.4)(M, H, D) * M ** (-0.5)), 'w_uk': _w((lambda *s: torch.randn(*s, dtype=torch.bfloat16) * 6.4)(Dc, H, D) * Dc ** (-0.5)), 'w_uv': _w((lambda *s: torch.randn(*s, dtype=torch.bfloat16) * 0.8)(Dc, H, D) * Dc ** (-0.5)), 'w_o': _w((lambda *s: torch.randn(*s, dtype=torch.bfloat16) * 0.8)(H, D, M) * (H * D) ** (-0.5))}
    _A_in = _A_setup()

    def _B_setup():
        B, S, D, F = (1, 2048, 512, 1792)
        Fh = F // 2
        return {'x': _w((lambda *s: torch.randn(*s, dtype=torch.bfloat16) * 0.05)(B, S, D)), 'w_in': _w((lambda *s: torch.randn(*s, dtype=torch.bfloat16) * 0.4)(D, 2 * Fh)), 'w_sp': _w(0.01 * (lambda *s: torch.randn(*s, dtype=torch.bfloat16) * 0.4)(S, S)), 'b_sp': _w(1.0 + 0.01 * (lambda *s: torch.randn(*s, dtype=torch.bfloat16) * 0.05)(S)), 'w_out': _w((lambda *s: torch.randn(*s, dtype=torch.bfloat16) * 0.05)(Fh, D))}
    _B_in = _B_setup()
    return {'A_x': _A_in['x'], 'A_c_kv': _A_in['c_kv'], 'A_w_q': _A_in['w_q'], 'A_w_uk': _A_in['w_uk'], 'A_w_uv': _A_in['w_uv'], 'A_w_o': _A_in['w_o'], 'B_x': _B_in['x'], 'B_w_in': _B_in['w_in'], 'B_w_sp': _B_in['w_sp'], 'B_b_sp': _B_in['b_sp'], 'B_w_out': _B_in['w_out'], 'gate_w': _w((lambda *s: torch.randn(*s, dtype=torch.bfloat16) * 0.05)(512) * 16.0)}

def reference(A_x, A_c_kv, A_w_q, A_w_uk, A_w_uv, A_w_o, B_x, B_w_in, B_w_sp, B_b_sp, B_w_out, gate_w):

    def _A_ref(x, c_kv, w_q, w_uk, w_uv, w_o):
        B, Sq, M = (x.shape[0], x.shape[1], x.shape[2])
        Sk = c_kv.shape[1]
        H, D = (w_q.shape[1], w_q.shape[2])
        q = torch.einsum('bqm,mhd->bhqd', x, w_q)
        k = torch.einsum('bkc,chd->bhkd', c_kv, w_uk)
        v = torch.einsum('bkc,chd->bhkd', c_kv, w_uv)
        scores = torch.einsum('bhqd,bhkd->bhqk', q, k) * D ** (-0.5)
        off = Sk - Sq
        qi = torch.arange(Sq)[:, None]
        kj = torch.arange(Sk)[None, :]
        cmask = kj <= qi + off
        scores = torch.where(cmask[None, None], scores, -1000000000.0)
        p = _softmax(scores, axis=-1)
        ctx = torch.einsum('bhqk,bhkd->bhqd', p, v)
        return torch.einsum('bhqd,hdm->bqm', ctx, w_o)

    def _B_ref(x, w_in, w_sp, b_sp, w_out):
        B, S, D = x.shape
        F = w_in.shape[-1]
        Fh = F // 2
        z = _gelu(torch.einsum('bsd,df->bsf', x, w_in))
        z1 = z[..., :Fh].clone()
        z2 = _layernorm(z[..., Fh:], axis=-1)
        g = torch.einsum('ts,bsf->btf', w_sp, z2) + b_sp[None, :, None]
        return torch.einsum('bsf,fd->bsd', z1 * g, w_out)
    x = A_x
    g = _sigmoid((x * gate_w).sum(-1, keepdims=True))
    a = _A_ref(x, A_c_kv, A_w_q, A_w_uk, A_w_uv, A_w_o)
    b = _B_ref(x, B_w_in, B_w_sp, B_b_sp, B_w_out)
    return g * a + (1 - g) * b
```

```python
class Asm:
    def __init__(self):
        self.lines = []
        self._lbl = 0
    def __call__(self, s):
        for ln in s.split("\n"):
            ln = ln.strip()
            if not ln:
                continue
            if ln.endswith(":") or ln.startswith("."):
                self.lines.append(ln)
            else:
                self.lines.append("    " + ln)
    def c(self, s):
        self.lines.append("    ; " + s)
    def label(self, base="L"):
        self._lbl += 1
        return f"{base}_{self._lbl}"
    def text(self):
        return "\n".join(self.lines) + "\n"

def vr(b, n=1):
    return f"v{b}" if n == 1 else f"v[{b}:{b+n-1}]"
def ar(b, n=1):
    return f"a{b}" if n == 1 else f"a[{b}:{b+n-1}]"
def sr(b, n=1):
    return f"s{b}" if n == 1 else f"s[{b}:{b+n-1}]"

def kernel_head(a, name):
    a(f""".globl {name}
.p2align 8
.type {name},@function
{name}:""")

def kernel_desc(name, vgpr, sgpr, accum):
    return f""".p2align 6
.amdhsa_kernel {name}
  .amdhsa_next_free_vgpr {vgpr}
  .amdhsa_next_free_sgpr {sgpr}
  .amdhsa_accum_offset {accum}
  .amdhsa_group_segment_fixed_size 0
  .amdhsa_kernarg_size 120
  .amdhsa_user_sgpr_count 2
  .amdhsa_user_sgpr_kernarg_segment_ptr 1
  .amdhsa_system_sgpr_workgroup_id_x 1
.end_amdhsa_kernel
"""

def make_srd(a, d, base_lo, nbytes, off=0):
    if off:
        a(f"s_add_u32 s{d}, s{base_lo}, {off:#x}")
        a(f"s_addc_u32 s{d+1}, s{base_lo+1}, 0")
    else:
        a(f"s_mov_b32 s{d}, s{base_lo}")
        a(f"s_mov_b32 s{d+1}, s{base_lo+1}")
    a(f"s_mov_b32 s{d+2}, {nbytes:#x}")
    a(f"s_mov_b32 s{d+3}, 0x00020000")

import struct
def f32bits(x):
    return "0x%08x" % struct.unpack("<I", struct.pack("<f", x))[0]
```

```python
from asmlib import *
MB = 1 << 20
WS_K = 0
WS_V = 16 * MB
WS_CTX = 32 * MB
WS_Z2R = 48 * MB
WS_Z2N = 52 * MB
WS_U = 56 * MB
WS_GATE = 60 * MB
WS_PART = 64 * MB
WS_XF = 96 * MB
Z2_BYTES = 2048 * 896 * 2

MFMA = "v_mfma_f32_32x32x16_bf16"

GELU_C0 = -2.0 * 0.7978845608028654 * 1.4426950408889634
GELU_C1 = GELU_C0 * 0.044715

def emit_gelu(a, regs, t0, s_c0, s_c1):
    n = len(regs)
    for i, r in enumerate(regs):
        a(f"v_mul_f32 v{t0+i}, v{r}, v{r}")
    for i, r in enumerate(regs):
        a(f"v_fma_f32 v{t0+i}, v{t0+i}, s{s_c1}, v{s_c0}")
    for i, r in enumerate(regs):
        a(f"v_mul_f32 v{t0+i}, v{t0+i}, v{r}")
    for i, r in enumerate(regs):
        a(f"v_exp_f32 v{t0+i}, v{t0+i}")
    for i, r in enumerate(regs):
        a(f"v_add_f32 v{t0+i}, 1.0, v{t0+i}")
    for i, r in enumerate(regs):
        a(f"v_rcp_f32 v{t0+i}, v{t0+i}")
    for i, r in enumerate(regs):
        a(f"v_mul_f32 v{r}, v{r}, v{t0+i}")

import os
STAMP = int(os.environ.get("STAMP", "0"))
WS_STAMP = 128 * MB
class Stamper:
    def __init__(self, a, base, n):
        self.a, self.base, self.n, self.i = a, base, n, 0
    def stamp(self, idx=None):
        if not STAMP: return
        i = self.i if idx is None else idx
        self.a(f"s_memtime s[{self.base+2*i}:{self.base+2*i+1}]")
        if idx is None: self.i += 1
    def dump(self, ws_lo, srd, wave_s, vtmp, kidx):
        if not STAMP: return
        a = self.a
        a("s_waitcnt lgkmcnt(0)")
        make_srd(a, srd, ws_lo, 1 << 20, WS_STAMP + kidx * (1 << 20))
        a(f"s_lshl_b32 s{self.base-1}, s2, 3")
        a(f"s_add_u32 s{self.base-1}, s{self.base-1}, s{wave_s}")
        a(f"s_lshl_b32 s{self.base-1}, s{self.base-1}, 7")
        a(f"v_mov_b32 v{vtmp+1}, 0")
        for i in range(self.n):
            a(f"v_mov_b32 v{vtmp}, s{self.base+2*i}")
            a(f"buffer_store_dword v{vtmp}, v{vtmp+1}, s[{srd}:{srd+3}], s{self.base-1} offen offset:{4*i}")
            a("s_nop 1")
```

```python
from gen_common import *

def gen_l1(a):
    name = "proj_kernel"
    kernel_head(a, name)
    a("s_cmp_ge_u32 s2, 256")
    a("s_cbranch_scc1 L1_end")
    st = Stamper(a, 74, 10)
    st.stamp(0)
    a("s_load_dwordx4 s[4:7], s[0:1], 0")
    a("s_load_dwordx4 s[8:11], s[0:1], 24")
    a("s_load_dwordx2 s[12:13], s[0:1], 56")
    a("s_load_dwordx2 s[14:15], s[0:1], 112")
    a("v_and_b32 v1, 63, v0")
    a("v_lshrrev_b32 v2, 6, v0")
    a("s_nop 0")
    a("v_readfirstlane_b32 s40, v2")
    a("s_and_b32 s41, s2, 7")
    a("s_lshr_b32 s47, s2, 3")
    a("s_and_b32 s42, s47, 7")
    a("s_lshr_b32 s47, s47, 3")
    a("s_lshr_b32 s43, s47, 1")
    a("s_and_b32 s47, s47, 1")
    a("s_lshl_b32 s44, s41, 1")
    a("s_add_u32 s44, s44, s47")
    a("s_lshr_b32 s47, s2, 3")
    a("s_cmp_ge_u32 s47, 28")
    a("s_cselect_b32 s56, 1, 0")
    a("s_cselect_b32 s48, 28, 0")
    a("s_sub_u32 s47, s47, s48")
    a("s_mul_i32 s48, s47, 37")
    a("s_lshr_b32 s48, s48, 8")
    a("s_mul_i32 s49, s48, 7")
    a("s_sub_u32 s46, s47, s49")
    a("s_lshl_b32 s45, s41, 2")
    a("s_add_u32 s45, s45, s48")
    a("s_lshl_b32 s52, s40, 10")
    a("v_lshrrev_b32 v4, 3, v1")
    a("v_and_b32 v5, 7, v1")
    a("v_lshrrev_b32 v6, 1, v4")
    a("s_and_b32 s47, s40, 1")
    a("s_lshl_b32 s47, s47, 2")
    a("v_add_u32 v6, s47, v6")
    a("v_xor_b32 v5, v5, v6")
    a("v_lshlrev_b32 v5, 4, v5")
    a("s_lshl_b32 s47, s40, 3")
    a("v_add_u32 v4, s47, v4")
    a("v_lshlrev_b32 v4, 10, v4")
    a("v_add_u32 v3, v4, v5")
    a("v_lshrrev_b32 v5, 5, v1")
    a("v_and_b32 v6, 31, v1")
    a("v_lshrrev_b32 v7, 2, v6")
    a("v_and_b32 v6, 3, v6")
    a("s_and_b32 s47, s40, 1")
    a("s_lshl_b32 s47, s47, 1")
    a("v_add_u32 v8, s47, v5")
    a("v_xor_b32 v7, v7, v8")
    a("v_lshlrev_b32 v7, 6, v7")
    a("v_lshlrev_b32 v6, 4, v6")
    a("v_add_u32 v7, v7, v6")
    a("s_lshl_b32 s47, s40, 1")
    a("v_add_u32 v5, s47, v5")
    a("v_lshlrev_b32 v5, 13, v5")
    a("v_add_u32 v4, v5, v7")
    a("v_lshrrev_b32 v6, 4, v1")
    a("v_and_b32 v7, 15, v1")
    a("v_lshrrev_b32 v8, 2, v7")
    a("v_and_b32 v7, 3, v7")
    a("v_xor_b32 v8, v8, v6")
    a("v_lshlrev_b32 v8, 6, v8")
    a("v_lshlrev_b32 v7, 4, v7")
    a("v_add_u32 v8, v8, v7")
    a("s_lshl_b32 s47, s40, 2")
    a("v_add_u32 v6, s47, v6")
    a("v_mul_u32_u24 v6, 3584, v6")
    a("v_add_u32 v5, v6, v8")
    a("v_and_b32 v6, 31, v1")
    a("v_lshrrev_b32 v7, 5, v1")
    a("v_lshrrev_b32 v26, 1, v6")
    a("v_and_b32 v26, 7, v26")
    a("v_xor_b32 v26, v26, v7")
    a("v_lshlrev_b32 v26, 4, v26")
    a("v_lshlrev_b32 v27, 7, v6")
    a("v_add_u32 v26, v26, v27")
    a("s_lshr_b32 s47, s40, 2")
    a("s_lshl_b32 s48, s47, 14")
    a("v_add_u32 v8, s48, v26")
    for ks in range(1, 4):
        a(f"v_xor_b32 v{8+ks}, {ks*32}, v8")
    for b in range(1, 3):
        for ks in range(4):
            a(f"v_add_u32 v{8+4*b+ks}, {b*65536}, v{8+ks}")
    a("s_lshl_b32 s48, s47, 12")
    a("v_add_u32 v112, s48, v26")
    for ks in range(1, 4):
        a(f"v_xor_b32 v{112+ks}, {ks*32}, v112")
    for b in range(1, 3):
        for ks in range(4):
            a(f"v_add_u32 v{112+4*b+ks}, {b*65536}, v{112+ks}")
    a("v_lshrrev_b32 v26, 2, v1")
    a("v_and_b32 v26, 3, v26")
    a("v_and_b32 v27, 3, v1")
    a("v_lshlrev_b32 v27, 3, v27")
    a("v_lshrrev_b32 v28, 4, v1")
    a("v_and_b32 v28, 1, v28")
    a("v_lshlrev_b32 v28, 5, v28")
    a("v_add_u32 v27, v27, v28")
    a("v_lshlrev_b32 v28, 3, v7")
    a("v_add_u32 v28, v28, v26")
    a("s_and_b32 s48, s40, 3")
    a("s_lshl_b32 s49, s48, 1")
    for nb in range(2):
        a(f"s_add_u32 s50, s49, {nb}")
        a("v_xor_b32 v29, s50, v26")
        a("v_lshlrev_b32 v29, 6, v29")
        a("v_add_u32 v29, v29, v27")
        a("v_lshlrev_b32 v30, 9, v28")
        a(f"v_add_u32 v{20+nb}, v29, v30")
    for b in range(1, 3):
        for nb in range(2):
            a(f"v_add_u32 v{20+2*b+nb}, {b*65536}, v{20+nb}")
    a("v_xor_b32 v29, s48, v26")
    a("v_lshlrev_b32 v29, 6, v29")
    a("v_add_u32 v29, v29, v27")
    a("v_lshlrev_b32 v30, 8, v28")
    a("v_add_u32 v124, v29, v30")
    a("v_add_u32 v125, 65536, v124")
    a("v_add_u32 v126, 131072, v124")
    a("s_waitcnt lgkmcnt(0)")
    make_srd(a, 16, 6, 2048 * 512 * 2)
    a("s_cmp_eq_u32 s43, 0")
    a("s_cselect_b32 s20, s8, s10")
    a("s_cselect_b32 s21, s9, s11")
    a(f"s_mov_b32 s22, {512*4096*2:#x}")
    a("s_mov_b32 s23, 0x00020000")
    make_srd(a, 24, 4, 2048 * 512 * 2)
    make_srd(a, 28, 12, 512 * 1792 * 2)
    a("s_lshl_b32 s47, s43, 24")
    a("s_add_u32 s32, s14, s47")
    a("s_addc_u32 s33, s15, 0")
    a(f"s_mov_b32 s34, {16*MB:#x}")
    a("s_mov_b32 s35, 0x00020000")
    make_srd(a, 36, 14, Z2_BYTES, WS_Z2R)
    make_srd(a, 64, 14, 2 * MB, WS_XF)
    a("s_and_b32 s47, s40, 3")
    a("s_add_u32 s47, s47, s46")
    a("s_add_u32 s47, s47, s56")
    a("s_cmp_eq_u32 s47, 0")
    a("s_cselect_b32 s57, 1, 0")
    a("s_lshl_b32 s58, s45, 1")
    a("s_lshr_b32 s47, s40, 2")
    a("s_add_u32 s58, s58, s47")
    a("s_lshl_b32 s58, s58, 15")
    a("v_lshlrev_b32 v127, 4, v1")
    a("s_lshl_b32 s50, s42, 18")
    a("s_lshl_b32 s51, s44, 9")
    a("s_lshl_b32 s53, s45, 16")
    a("s_lshl_b32 s54, s46, 8")
    a("s_add_u32 s54, s54, 1792")

    def dma_list(u):
        slot = (u % 5) * 32768
        out = []
        for t in range(4):
            if u < 16:
                s = u // 2
                if u % 2 == 0:
                    v, srd, base, off = 3, 16, 50, t * 65536 + s * 128
                else:
                    v, srd, base, off = 4, 20, 51, (s * 64 + 16 * t) * 8192
            else:
                z = (u - 16) // 3
                r = (u - 16) % 3
                if r == 0:
                    v, srd, base, off = 3, 24, 53, z * 512 + t * 128
                else:
                    v, srd, base, off = 5, 28, 54, (z * 256 + (r - 1) * 128 + 32 * t) * 3584
            out.append([f"s_add_u32 m0, s52, {slot + t*8192}",
                        f"s_add_u32 s60, s{base}, {off}",
                        f"buffer_load_dwordx4 v{v}, s[{srd}:{srd+3}], s60 offen lds"])
        return out

    def slot_addr(u):
        sl = u % 5
        return sl // 2, (sl % 2) * 32768

    def reads(gk):
        s, ks = gk // 4, gk % 4
        F = 32 + 24 * (gk & 1)
        out = []
        ba, oa = slot_addr(2 * s)
        bb, ob = slot_addr(2 * s + 1)
        ra = [f"ds_read_b128 v[{F+4*mb}:{F+4*mb+3}], v{8+4*ba+ks} offset:{oa+mb*4096}" for mb in range(4)]
        rb = []
        for nb in range(2):
            for j in range(2):
                rb.append(f"ds_read_b64_tr_b16 v[{F+16+4*nb+2*j}:{F+16+4*nb+2*j+1}], v{20+2*bb+nb} offset:{ob+(16*ks+4*j)*512}")
        return [ra[0], rb[0], rb[1], rb[2], rb[3], ra[1], ra[2], ra[3]]

    for u in range(5):
        for th in dma_list(u):
            for i in th: a(i)
    st.stamp(1)
    a("s_waitcnt vmcnt(12)")
    a("s_barrier")
    st.stamp(2)
    for r in reads(0): a(r)
    a("s_cmp_eq_u32 s43, 0")
    a("s_cbranch_scc0 L1_vtype")

    def mainloop(vtype):
        for gk in range(32):
            s, ks = gk // 4, gk % 4
            F = 32 + 24 * (gk & 1)
            if gk == 16: st.stamp(3)
            a("s_waitcnt lgkmcnt(0)")
            fill = []
            if ks == 3:
                a("s_waitcnt vmcnt(0)" if s == 7 else "s_waitcnt vmcnt(4)")
                a("s_barrier")
            if gk < 31:
                fill += [[r] for r in reads(gk + 1)]
            dm = []
            if ks == 3:
                dm = dma_list(2 * s + 5)
                pend = dma_list(2 * s + 6)
            elif ks == 0 and s > 0:
                dm = pend
            if gk == 31:
                dm = dm + pend
            mf = []
            for mb in range(4):
                for nb in range(2):
                    acc = 128 + (mb * 2 + nb) * 16
                    A = f"v[{F+4*mb}:{F+4*mb+3}]"
                    B = f"v[{F+16+4*nb}:{F+16+4*nb+3}]"
                    C = "0" if gk == 0 else f"v[{acc}:{acc+15}]"
                    if vtype:
                        mf.append(f"{MFMA} v[{acc}:{acc+15}], {A}, {B}, {C}")
                    else:
                        mf.append(f"{MFMA} v[{acc}:{acc+15}], {B}, {A}, {C}")
            for i in range(8):
                a(mf[i])
                if i < len(fill):
                    for x in fill[i]: a(x)
                if i % 2 == 1 and dm:
                    for x in dm.pop(0): a(x)
                    if gk == 31 and dm:
                        for x in dm.pop(0): a(x)

    def z2_stage(z):
        ua = 16 + 3 * z
        ba, oa = slot_addr(ua)
        def rd(bt):
            F = 32 + 32 * (bt & 1)
            out = []
            for q in range(4):
                kk = bt * 4 + q
                sub, ks = kk // 4, kk % 4
                out.append(f"ds_read_b128 v[{F+8*q}:{F+8*q+3}], v{112+4*ba+ks} offset:{oa+sub*8192}")
                ub = ua + 1 + kk // 8
                bb, ob = slot_addr(ub)
                k8 = kk % 8
                for j in range(2):
                    out.append(f"ds_read_b64_tr_b16 v[{F+8*q+4+2*j}:{F+8*q+5+2*j}], v{124+bb} offset:{ob+(16*k8+4*j)*256}")
            return out
        for r in rd(0): a(r)
        for bt in range(4):
            a("s_waitcnt lgkmcnt(0)")
            if bt < 3:
                for r in rd(bt + 1): a(r)
            F = 32 + 32 * (bt & 1)
            lb = a.label("L1_nx")
            a("s_cmp_eq_u32 s57, 0")
            a(f"s_cbranch_scc1 {lb}")
            a(f"s_add_u32 s60, s58, {(z*16+bt*4)*1024}")
            for q in range(4):
                a(f"buffer_store_dwordx4 v[{F+8*q}:{F+8*q+3}], v127, s[64:67], s60 offen offset:{q*1024}")
            a(f"{lb}:")
            for q in range(4):
                C = "0" if (z == 0 and bt == 0 and q == 0) else "v[96:111]"
                a(f"{MFMA} v[96:111], v[{F+8*q}:{F+8*q+3}], v[{F+8*q+4}:{F+8*q+7}], {C}")

    def after_main(vtype):
        st.stamp(4)
        z2_stage(0)
        a("s_barrier")
        st.stamp(5)
        for th in dma_list(21):
            for i in th: a(i)
        a("s_lshr_b32 s47, s40, 1")
        a("s_and_b32 s47, s47, 1")
        a("s_lshl_b32 s48, s44, 1")
        a("s_add_u32 s47, s47, s48")
        a("s_lshl_b32 s47, s47, 19")
        a("s_lshl_b32 s48, s42, 16")
        a("s_add_u32 s47, s47, s48")
        a("s_lshr_b32 s48, s40, 2")
        a("s_lshl_b32 s48, s48, 15")
        a("s_add_u32 s47, s47, s48")
        a("s_and_b32 s49, s40, 1")
        if not vtype:
            a("s_lshl_b32 s49, s49, 12")
        else:
            a("s_lshl_b32 s49, s49, 13")
        a("s_add_u32 s47, s47, s49")
        a("v_lshlrev_b32 v26, 4, v1")
        for mb in range(4):
            for nb in range(2):
                acc = 128 + (mb * 2 + nb) * 16
                for j in range(8):
                    a(f"v_cvt_pk_bf16_f32 v{acc+j}, v{acc+2*j}, v{acc+2*j+1}")
                if not vtype:
                    so, imm = mb * 8192, nb * 2048
                else:
                    so, imm = (mb >> 1) * 16384 + nb * 4096, (mb & 1) * 2048
                a(f"s_add_u32 s60, s47, {so}")
                for g in range(2):
                    a(f"buffer_store_dwordx4 v[{acc+4*g}:{acc+4*g+3}], v26, s[32:35], s60 offen offset:{imm+g*1024}")
        a("s_branch L1_z2b")

    mainloop(False)
    after_main(False)
    a("L1_vtype:")
    mainloop(True)
    after_main(True)
    a("L1_z2b:")
    st.stamp(6)
    a("s_waitcnt vmcnt(16)")
    a("s_barrier")
    st.stamp(7)
    z2_stage(1)
    a("s_cmp_eq_u32 s56, 1")
    a("s_cbranch_scc1 L1_fin")
    a(f"s_mov_b32 s47, {f32bits(GELU_C1)}")
    a(f"v_mov_b32 v31, {f32bits(GELU_C0)}")
    a("v_lshlrev_b32 v26, 4, v1")
    a("s_and_b32 s48, s40, 3")
    a("s_lshl_b32 s49, s46, 2")
    a("s_add_u32 s48, s48, s49")
    a("s_lshl_b32 s48, s48, 17")
    a("s_lshr_b32 s49, s40, 2")
    a("s_lshl_b32 s49, s49, 11")
    a("s_add_u32 s48, s48, s49")
    a("s_lshl_b32 s49, s45, 12")
    a("s_add_u32 s48, s48, s49")
    a("s_nop 7")
    emit_gelu(a, list(range(96, 112)), 32, 31, 47)
    for j in range(8):
        a(f"v_cvt_pk_bf16_f32 v{96+j}, v{96+2*j}, v{96+2*j+1}")
    a("s_nop 1")
    for g in range(2):
        a(f"v_permlane32_swap_b32 v{96+4*g}, v{96+4*g+2}")
        a(f"v_permlane32_swap_b32 v{96+4*g+1}, v{96+4*g+3}")
    for g in range(2):
        a(f"buffer_store_dwordx4 v[{96+4*g}:{96+4*g+3}], v26, s[36:39], s48 offen offset:{g*1024}")
    a("L1_fin:")
    st.stamp(8)
    if STAMP:
        a("s_waitcnt vmcnt(0)")
    st.stamp(9)
    st.dump(14, 68, 40, 26, 0)
    a("L1_end:")
    a("s_endpgm")
    return kernel_desc(name, 256, 96, 256)
```

```python
from gen_common import *
import math

KS = [131072, 0]
VS = [32768, 65536]
QX = 98304
LNS = 160 * 1024 - 1024
THR = 8.0

NEGM = 16
QF = 32
FR = 64
SB = [96, 128]
OA = 160
V_LANE, V_L16, V_KA, V_VA, V_M, V_LA, V_LB, V_MX, V_T0, V_T1, V_ALPHA, V_LSAVE, V_NINF, V_MX2 = 1, 2, 3, 4, 5, 6, 7, 8, 9, 10, 11, 12, 13, 14
S_W, S_G, S_WQ, S_HEAD, S_I, S_N1, S_J = 56, 57, 58, 59, 60, 61, 62
S_T0, S_T1, S_T2 = 63, 96, 97
S_PEND, S_HB, S_REL, S_FIRST = 98, 99, 100, 101
TRI = 64

def dpp_reduce(a, regs):
    for ctl in ("quad_perm:[1,0,3,2] row_mask:0xf bank_mask:0xf", "quad_perm:[2,3,0,1] row_mask:0xf bank_mask:0xf",
                "row_half_mirror row_mask:0xf bank_mask:0xf", "row_mirror row_mask:0xf bank_mask:0xf",
                "row_bcast:15 row_mask:0xa bank_mask:0xf", "row_bcast:31 row_mask:0xc bank_mask:0xf"):
        if len(regs) < 3:
            a("s_nop 1")
        for r in regs:
            a(f"v_add_f32_dpp v{r}, v{r}, v{r} {ctl}")

def gen_l2(a):
    name = "attn_kernel"
    kernel_head(a, name)
    st = Stamper(a, 4, 5)
    a("s_cmp_ge_u32 s2, 256")
    a("s_cbranch_scc1 L2_end")
    a("s_load_dwordx2 s[4:5], s[0:1], 0")
    a("s_load_dwordx2 s[8:9], s[0:1], 16")
    a("s_load_dwordx2 s[10:11], s[0:1], 88")
    a("s_load_dwordx2 s[14:15], s[0:1], 112")
    a(f"v_and_b32 v{V_LANE}, 63, v0")
    a("v_lshrrev_b32 v2, 6, v0")
    a("s_nop 0")
    a(f"v_readfirstlane_b32 s{S_W}, v2")
    a(f"v_lshlrev_b32 v{V_L16}, 4, v{V_LANE}")
    a(f"s_lshr_b32 s{S_G}, s{S_W}, 2")
    a(f"s_and_b32 s{S_WQ}, s{S_W}, 3")
    a(f"s_and_b32 s{S_T0}, s2, 7")
    a(f"s_lshr_b32 s{S_T1}, s2, 3")
    a(f"s_and_b32 s{S_HEAD}, s{S_T1}, 3")
    a(f"s_lshl_b32 s{S_T0}, s{S_T0}, 2")
    a(f"s_add_u32 s{S_HEAD}, s{S_HEAD}, s{S_T0}")
    a(f"s_lshr_b32 s{S_I}, s{S_T1}, 2")
    a(f"s_lshl_b32 s{S_N1}, s{S_I}, 1")
    a(f"s_add_u32 s{S_N1}, s{S_N1}, 2")
    a(f"s_lshl_b32 s{S_HB}, s{S_HEAD}, 19")
    a(f"v_and_b32 v16, 31, v{V_LANE}")
    a(f"v_lshrrev_b32 v17, 5, v{V_LANE}")
    a("v_lshlrev_b32 v17, 2, v17")
    a("v_sub_u32 v16, v16, v17")
    for r in range(16):
        cr = 8 * (r >> 2) + (r & 3)
        a(f"v_cmp_le_i32 s[{TRI+2*r}:{TRI+2*r+1}], {cr}, v16")
    a(f"v_lshrrev_b32 v19, 4, v{V_LANE}")
    a(f"v_and_b32 v20, 15, v{V_LANE}")
    a("v_lshrrev_b32 v21, 2, v20")
    a("v_and_b32 v20, 3, v20")
    a("v_xor_b32 v21, v21, v19")
    a("v_lshlrev_b32 v21, 6, v21")
    a("v_lshlrev_b32 v20, 4, v20")
    a("v_add_u32 v21, v21, v20")
    a(f"s_lshl_b32 s{S_T0}, s{S_W}, 2")
    a(f"v_add_u32 v19, s{S_T0}, v19")
    a("v_lshlrev_b32 v19, 13, v19")
    a("v_add_u32 v18, v19, v21")
    a(f"v_lshrrev_b32 v19, 2, v{V_LANE}")
    a("v_and_b32 v19, 3, v19")
    a(f"v_and_b32 v20, 3, v{V_LANE}")
    a("v_lshlrev_b32 v20, 3, v20")
    a(f"v_lshrrev_b32 v21, 4, v{V_LANE}")
    a("v_and_b32 v21, 1, v21")
    a("v_lshlrev_b32 v21, 5, v21")
    a("v_add_u32 v20, v20, v21")
    a(f"v_lshrrev_b32 v21, 5, v{V_LANE}")
    a("v_lshlrev_b32 v21, 3, v21")
    a("v_add_u32 v21, v21, v19")
    a("v_lshlrev_b32 v21, 8, v21")
    a("v_add_u32 v20, v20, v21")
    for db in range(4):
        a(f"v_xor_b32 v21, {db}, v19")
        a("v_lshlrev_b32 v21, 6, v21")
        a(f"v_add_u32 v{48+db}, v20, v21")
        a(f"v_add_u32 v{52+db}, 65536, v{48+db}")
    a("s_waitcnt lgkmcnt(0)")
    make_srd(a, 16, 8, 512 * 4096 * 2)
    make_srd(a, 20, 14, 16 * MB, WS_K)
    make_srd(a, 24, 14, 16 * MB, WS_V)
    make_srd(a, 28, 14, 16 * MB, WS_CTX)
    make_srd(a, 32, 14, 2 * MB, WS_XF)
    make_srd(a, 36, 14, Z2_BYTES, WS_Z2R)
    make_srd(a, 40, 14, Z2_BYTES, WS_Z2N)
    make_srd(a, 44, 4, 2048 * 512 * 2)
    make_srd(a, 48, 10, 1024)
    make_srd(a, 52, 14, 8192, WS_GATE)
    st.stamp(0)
    vm = [0]
    def vmop(s):
        a(s); vm[0] += 1
        return vm[0]
    def wait_for(idx):
        a(f"s_waitcnt vmcnt({vm[0]-idx})")
    a(f"v_lshrrev_b32 v19, 5, v{V_LANE}")
    a(f"s_lshl_b32 s{S_T0}, s{S_W}, 1")
    a(f"v_add_u32 v19, s{S_T0}, v19")
    a("v_lshlrev_b32 v19, 17, v19")
    a(f"v_and_b32 v20, 31, v{V_LANE}")
    a("v_lshlrev_b32 v20, 4, v20")
    a("v_add_u32 v56, v19, v20")
    a(f"v_add_u32 v57, {16<<17}, v56")
    a(f"s_lshr_b32 s{S_T1}, s2, 1")
    a(f"s_lshl_b32 s{S_T1}, s{S_T1}, 10")
    a(f"s_and_b32 s{S_T2}, s2, 1")
    a(f"s_lshl_b32 s{S_T2}, s{S_T2}, 9")
    a(f"s_add_u32 s{S_PEND}, s{S_T1}, s{S_T2}")
    a("v_mov_b32 v58, 0")
    vmop(f"buffer_load_dwordx4 v[224:227], v56, s[36:39], s{S_PEND} offen")
    vmop(f"buffer_load_dwordx4 v[228:231], v57, s[36:39], s{S_PEND} offen")
    vmop(f"buffer_load_dwordx4 v[232:235], v58, s[36:39], s{S_PEND} offen")
    a(f"s_lshl_b32 s{S_T0}, s2, 3")
    a(f"s_add_u32 s{S_REL}, s{S_T0}, s{S_W}")
    a(f"s_lshl_b32 s{S_T0}, s{S_REL}, 10")
    vmop(f"buffer_load_dwordx4 v[236:239], v{V_L16}, s[44:47], s{S_T0} offen")
    i_ln = vmop(f"buffer_load_dwordx4 v[240:243], v{V_L16}, s[48:51], 0 offen")
    a(f"s_sub_u32 s{S_T0}, 15, s{S_I}")
    a(f"s_cmp_eq_u32 s{S_G}, 0")
    a(f"s_cselect_b32 s{S_T0}, s{S_T0}, s{S_I}")
    a(f"s_lshl_b32 s{S_T0}, s{S_T0}, 2")
    a(f"s_add_u32 s{S_T0}, s{S_T0}, s{S_WQ}")
    a(f"s_lshl_b32 s{S_FIRST}, s{S_T0}, 15")
    a(f"s_lshl_b32 s{S_T2}, s{S_HEAD}, 8")
    a(f"s_lshl_b32 s{S_J}, s{S_W}, 10")
    i_chunk = []
    for c in range(4):
        for t in range(4):
            a(f"s_add_u32 m0, s{S_J}, {c*32768 + t*8192}")
            a(f"s_add_u32 s{S_T0}, s{S_T2}, {(c*128 + 32*t)*8192}")
            vmop(f"buffer_load_dwordx4 v18, s[16:19], s{S_T0} offen lds")
        for q4 in range(2):
            a(f"s_add_u32 s{S_T0}, s{S_FIRST}, {(c*8+q4*4)*1024}")
            for q in range(4):
                ks = c * 8 + q4 * 4 + q
                idx = vmop(f"buffer_load_dwordx4 v[{96+4*ks}:{96+4*ks+3}], v{V_L16}, s[32:35], s{S_T0} offen offset:{q*1024}")
        i_chunk.append(idx)
    a(f"s_lshl_b32 s{S_T1}, s{S_W}, 11")
    a(f"s_add_u32 m0, s{S_T1}, {KS[0]}")
    a(f"s_add_u32 s{S_T0}, s{S_HB}, s{S_T1}")
    vmop(f"buffer_load_dwordx4 v{V_L16}, s[20:23], s{S_T0} offen lds")
    vmop(f"buffer_load_dwordx4 v{V_L16}, s[20:23], s{S_T0} offen offset:1024 lds")
    wait_for(i_ln)
    def unpack(src, dst):
        for k in range(4):
            a(f"v_lshlrev_b32 v{dst+2*k}, 16, v{src+k}")
            a(f"v_and_b32 v{dst+2*k+1}, 0xffff0000, v{src+k}")
    unpack(224, 16); unpack(228, 24); unpack(232, 32)
    for j in range(8):
        a(f"v_sub_f32 v{16+j}, v{16+j}, v{32+j}")
    a(f"s_cmp_lt_u32 s{S_W}, 6")
    a(f"s_cselect_b32 s{S_T0}, 1.0, 0")
    for j in range(8):
        a(f"v_sub_f32 v{24+j}, v{24+j}, v{32+j}")
    for j in range(8):
        a(f"v_mul_f32 v{24+j}, s{S_T0}, v{24+j}")
    for j in range(8):
        a(f"v_add_f32 v{64+2*j}, v{16+j}, v{24+j}")
        a(f"v_mul_f32 v{65+2*j}, v{16+j}, v{16+j}")
    for j in range(8):
        a(f"v_fmac_f32 v{65+2*j}, v{24+j}, v{24+j}")
    unpack(236, 40); unpack(240, 244)
    a("v_mul_f32 v80, v40, v244")
    for j in range(1, 8):
        a(f"v_fmac_f32 v80, v{40+j}, v{244+j}")
    dpp_reduce(a, list(range(64, 81)))
    a(f"s_lshl_b32 s{S_T0}, s{S_W}, 6")
    a(f"s_add_u32 s{S_T0}, s{S_T0}, {LNS}")
    a(f"v_mov_b32 v81, s{S_T0}")
    a(f"v_mul_f32 v80, {f32bits(-1.4426950408889634)}, v80")
    a("v_exp_f32 v80, v80")
    a(f"s_lshl_b32 s{S_T1}, s{S_REL}, 2")
    a("v_add_f32 v80, 1.0, v80")
    a("v_rcp_f32 v80, v80")
    a("s_mov_b32 exec_lo, 0")
    a("s_mov_b32 exec_hi, 0x80000000")
    for k in range(4):
        a(f"ds_write_b128 v81, v[{64+4*k}:{64+4*k+3}] offset:{16*k}")
    vmop(f"buffer_store_dword v80, v58, s[52:55], s{S_T1} offen")
    a("s_mov_b64 exec, -1")
    a("s_waitcnt lgkmcnt(0)")
    a("s_barrier")
    a(f"v_lshlrev_b32 v81, 3, v{V_LANE}")
    a(f"ds_read_b64 v[64:65], v81 offset:{LNS}" if LNS < 65536 else f"v_add_u32 v81, {LNS}, v81")
    if LNS >= 65536:
        a("ds_read_b64 v[64:65], v81")
    a("s_waitcnt lgkmcnt(0)")
    a("v_add_f32_dpp v64, v64, v64 row_ror:8 row_mask:0xf bank_mask:0xf")
    a("v_add_f32_dpp v65, v65, v65 row_ror:8 row_mask:0xf bank_mask:0xf")
    for op in ("v_permlane16_swap_b32", "v_permlane32_swap_b32"):
        a("v_mov_b32 v66, v64")
        a("v_mov_b32 v67, v65")
        a("s_nop 1")
        a(f"{op} v64, v66")
        a(f"{op} v65, v67")
        a("s_nop 1")
        a("v_add_f32 v64, v64, v66")
        a("v_add_f32 v65, v65, v67")
    a(f"v_mul_f32 v64, {f32bits(1.0/896)}, v64")
    a(f"v_mul_f32 v65, {f32bits(1.0/896)}, v65")
    a("v_fma_f32 v65, -v64, v64, v65")
    a("v_max_f32 v65, 0, v65")
    a(f"v_add_f32 v65, {f32bits(1e-5)}, v65")
    a("v_rsq_f32 v65, v65")
    a("s_nop 1")
    for j in range(8):
        a(f"v_readlane_b32 s{S_T0}, v64, {j}")
        a(f"v_readlane_b32 s{S_T1}, v65, {j}")
        a("s_nop 1")
        a(f"v_subrev_f32 v{16+j}, s{S_T0}, v{16+j}")
        a(f"v_subrev_f32 v{24+j}, s{S_T0}, v{24+j}")
        a(f"v_mul_f32 v{16+j}, s{S_T1}, v{16+j}")
        a(f"v_mul_f32 v{24+j}, s{S_T1}, v{24+j}")
    for k in range(4):
        a(f"v_cvt_pk_bf16_f32 v{64+k}, v{16+2*k}, v{17+2*k}")
        a(f"v_cvt_pk_bf16_f32 v{68+k}, v{24+2*k}, v{25+2*k}")
    vmop(f"buffer_store_dwordx4 v[64:67], v56, s[40:43], s{S_PEND} offen")
    vmop(f"buffer_store_dwordx4 v[68:71], v57, s[40:43], s{S_PEND} offen")
    st.stamp(1)
    QACC = [64, 80, 224, 240]
    def wreads(ks):
        c, k8 = ks // 8, ks % 8
        F = 16 + 16 * (ks & 1)
        out = []
        for db in range(4):
            for j in range(2):
                off = (c & 1) * 32768 + (16 * k8 + 4 * j) * 256
                out.append(f"ds_read_b64_tr_b16 v[{F+4*db+2*j}:{F+4*db+2*j+1}], v{48+4*(c>>1)+db} offset:{off}")
        return out
    def kv_dma_fixed(srd, tile, slot):
        a(f"s_lshl_b32 s{S_T1}, s{S_W}, 11")
        a(f"s_add_u32 m0, s{S_T1}, {slot}")
        a(f"s_add_u32 s{S_T0}, s{S_HB}, s{S_T1}")
        a(f"s_add_u32 s{S_T0}, s{S_T0}, {tile*16384}")
        vmop(f"buffer_load_dwordx4 v{V_L16}, s[{srd}:{srd+3}], s{S_T0} offen lds")
        vmop(f"buffer_load_dwordx4 v{V_L16}, s[{srd}:{srd+3}], s{S_T0} offen offset:1024 lds")
    wait_for(i_chunk[0])
    a("s_barrier")
    for r in wreads(0): a(r)
    for ks in range(32):
        c, k8 = ks // 8, ks % 8
        F = 16 + 16 * (ks & 1)
        a("s_waitcnt lgkmcnt(0)")
        if k8 == 7:
            if c < 3:
                wait_for(i_chunk[c + 1])
            a("s_barrier")
            if c == 0: kv_dma_fixed(20, 1, KS[1])
            if c == 1: kv_dma_fixed(24, 0, VS[0])
        nxt = wreads(ks + 1) if ks < 31 else []
        for db in range(4):
            C = "0" if ks == 0 else f"v[{QACC[db]}:{QACC[db]+15}]"
            a(f"{MFMA} v[{QACC[db]}:{QACC[db]+15}], v[{F+4*db}:{F+4*db+3}], v[{96+4*ks}:{96+4*ks+3}], {C}")
            for r in nxt[2*db:2*db+2]: a(r)
    st.stamp(2)
    a(f"s_mov_b32 s{S_T0}, {f32bits(1.4426950408889634/math.sqrt(128.0))}")
    a("s_nop 7")
    a("s_nop 3")
    for db in range(4):
        for r in range(16):
            a(f"v_mul_f32 v{QACC[db]+r}, s{S_T0}, v{QACC[db]+r}")
    for db in range(4):
        for k in range(8):
            a(f"v_cvt_pk_bf16_f32 v{QF+8*db+k}, v{QACC[db]+2*k}, v{QACC[db]+2*k+1}")
    a(f"s_lshl_b32 s{S_T0}, s{S_WQ}, 13")
    a(f"s_add_u32 s{S_T0}, s{S_T0}, {QX}")
    a(f"v_add_u32 v15, s{S_T0}, v{V_L16}")
    a(f"s_cmp_eq_u32 s{S_G}, 0")
    a("s_cbranch_scc0 L2_noqx")
    for ks in range(8):
        a(f"ds_write_b128 v15, v[{QF+4*ks}:{QF+4*ks+3}] offset:{ks*1024}")
    a("L2_noqx:")
    for r in range(16): a(f"v_mov_b32 v{NEGM+r}, 0")
    for r in range(64): a(f"v_mov_b32 v{OA+r}, 0")
    a(f"v_mov_b32 v{V_M}, 0")
    a(f"v_mov_b32 v{V_LA}, 0")
    a(f"v_mov_b32 v{V_LB}, 0")
    a(f"v_mov_b32 v{V_LSAVE}, 0")
    a(f"v_mov_b32 v{V_ALPHA}, 1.0")
    a(f"v_mov_b32 v{V_NINF}, 0xff800000")
    a(f"s_mov_b32 s{S_PEND}, 0")
    a(f"v_add_u32 v{V_KA}, {KS[0]}, v{V_L16}")
    a("s_waitcnt vmcnt(0) lgkmcnt(0)")
    a("s_barrier")

    def kread(n):
        return f"ds_read_b128 v[{FR+4*(n%8)}:{FR+4*(n%8)+3}], v{V_KA} offset:{n*1024}"
    def vread(n):
        ks, db = n // 4, n % 4
        return f"ds_read_b128 v[{FR+4*(n%8)}:{FR+4*(n%8)+3}], v{V_VA} offset:{(db*4+ks)*1024}"
    def qk_mfma(n, S):
        kb, ks = n // 8, n % 8
        D = S + 16 * kb
        C = f"v[{NEGM}:{NEGM+15}]" if ks == 0 else f"v[{D}:{D+15}]"
        return f"{MFMA} v[{D}:{D+15}], v[{FR+4*(n%8)}:{FR+4*(n%8)+3}], v[{QF+4*ks}:{QF+4*ks+3}], {C}"
    def pv_mfma(n, S):
        ks, db = n // 4, n % 4
        P = S + 16 * (ks >> 1) + 8 * (ks & 1)
        D = OA + 16 * db
        return f"{MFMA} v[{D}:{D+15}], v[{FR+4*(n%8)}:{FR+4*(n%8)+3}], v[{P}:{P+3}], v[{D}:{D+15}]"
    def e_ops(B):
        ops = []
        for q in range(9):
            if q < 8:
                ops.append(f"v_exp_f32 v{B+2*q}, v{B+2*q}")
                ops.append(f"v_exp_f32 v{B+2*q+1}, v{B+2*q+1}")
            if q > 0:
                p = q - 1
                ops.append(f"v_add_f32 v{V_LA}, v{V_LA}, v{B+2*p}")
                ops.append(f"v_add_f32 v{V_LB}, v{V_LB}, v{B+2*p+1}")
                ops.append(f"v_cvt_pk_bf16_f32 v{B+(p&3)+8*(p>>2)}, v{B+2*p}, v{B+2*p+1}")
        return ops
    def max_ops(S):
        o0 = [f"v_max3_f32 v{V_MX}, v{S}, v{S+1}, v{S+2}"]
        for k in range(6):
            o0.append(f"v_max3_f32 v{V_MX}, v{V_MX}, v{S+3+2*k}, v{S+4+2*k}")
        o1 = [f"v_max3_f32 v{V_MX2}, v{S+15}, v{S+16}, v{S+17}"]
        for k in range(7):
            o1.append(f"v_max3_f32 v{V_MX2}, v{V_MX2}, v{S+18+2*k}, v{S+19+2*k}")
        o1.append(f"v_max_f32 v{V_MX}, v{V_MX}, v{V_MX2}")
        return o0, o1

    outl = []
    def tile_scalars(delta):
        a(f"s_add_u32 s{S_T0}, s{S_J}, {delta}")
        a(f"s_mov_b32 s{S_REL}, -8")
        a(f"s_sub_u32 s{S_T1}, s{S_T0}, s{S_N1}")
        a(f"s_add_u32 s{S_T1}, s{S_T1}, 2")
        a(f"s_cmp_lt_u32 s{S_T1}, 2")
        a(f"s_cselect_b32 s{S_T2}, s{S_G}, 0")
        a(f"s_lshl_b32 s{S_T1}, s{S_T1}, 1")
        a(f"s_sub_u32 s{S_T1}, s{S_T1}, s{S_WQ}")
        a(f"s_cmp_eq_u32 s{S_T2}, 1")
        a(f"s_cselect_b32 s{S_REL}, s{S_T1}, s{S_REL}")
        a(f"s_lshl_b32 s{S_T1}, s{S_G}, 1")
        a(f"s_sub_u32 s{S_T1}, s{S_T1}, s{S_WQ}")
        a(f"s_cmp_eq_u32 s{S_T0}, 16")
        a(f"s_cselect_b32 s{S_REL}, s{S_T1}, s{S_REL}")
        a(f"s_cmp_eq_u32 s{S_T0}, s{S_N1}")
        a(f"s_cselect_b32 s{S_FIRST}, s{S_G}, 0")
        a(f"s_cmp_eq_u32 s{S_T0}, 0")
        a(f"s_cselect_b32 s{S_FIRST}, 1, s{S_FIRST}")

    def mask_hook(S):
        lb, lr = a.label("L2_mask"), a.label("L2_maskret")
        a(f"s_cmp_ge_i32 s{S_REL}, -1")
        a(f"s_cbranch_scc1 {lb}")
        a(f"{lr}:")
        blk = [f"{lb}:", "s_nop 15"]
        for kb in range(2):
            l1, l2 = a.label("L2_mk"), a.label("L2_mk")
            blk.append(f"s_cmp_lt_i32 s{S_REL}, {-kb}")
            blk.append(f"s_cbranch_scc1 {l2}")
            blk.append(f"s_cmp_eq_i32 s{S_REL}, {-kb}")
            blk.append(f"s_cbranch_scc1 {l1}")
            for r in range(16):
                blk.append(f"v_mov_b32 v{S+16*kb+r}, v{V_NINF}")
            blk.append(f"s_branch {l2}")
            blk.append(f"{l1}:")
            for r in range(16):
                blk.append(f"v_cndmask_b32 v{S+16*kb+r}, v{V_NINF}, v{S+16*kb+r}, s[{TRI+2*r}:{TRI+2*r+1}]")
            blk.append(f"{l2}:")
        blk.append(f"s_branch {lr}")
        outl.append(blk)

    def slow_hook(S):
        lb, lr = a.label("L2_slow"), a.label("L2_slowret")
        a(f"v_cmp_lt_f32 vcc, {THR}, v{V_MX}" if THR in (0.5, 1.0, 2.0, 4.0) else f"v_cmp_lt_f32 vcc, {f32bits(THR)}, v{V_MX}")
        a(f"s_cmp_eq_u32 s{S_FIRST}, 1")
        a(f"s_cbranch_scc1 {lb}")
        a(f"s_cbranch_vccnz {lb}")
        a(f"{lr}:")
        blk = [f"{lb}:"]
        blk += [f"v_mov_b32 v{V_T0}, v{V_MX}", "s_nop 1", f"v_permlane32_swap_b32 v{V_MX}, v{V_T0}", "s_nop 1",
                f"v_max_f32 v{V_MX}, v{V_MX}, v{V_T0}"]
        lf, lj = a.label("L2_sf"), a.label("L2_sj")
        blk += [f"s_cmp_eq_u32 s{S_FIRST}, 1", f"s_cbranch_scc1 {lf}"]
        blk += [f"v_max_f32 v{V_MX}, 0, v{V_MX}",
                f"v_sub_f32 v{V_T0}, 0, v{V_MX}",
                f"v_exp_f32 v{V_ALPHA}, v{V_T0}",
                f"v_add_f32 v{V_M}, v{V_M}, v{V_MX}",
                f"s_mov_b32 s{S_PEND}, 1",
                f"v_mul_f32 v{V_LA}, v{V_LA}, v{V_ALPHA}",
                f"v_mul_f32 v{V_LB}, v{V_LB}, v{V_ALPHA}",
                f"s_branch {lj}"]
        blk += [f"{lf}:",
                f"v_max_f32 v{V_MX}, {f32bits(-1e30)}, v{V_MX}",
                f"v_add_f32 v{V_LSAVE}, v{V_LA}, v{V_LB}",
                f"v_mov_b32 v{V_LA}, 0", f"v_mov_b32 v{V_LB}, 0",
                f"v_add_f32 v{V_M}, v{V_M}, v{V_MX}"]
        blk += [f"{lj}:"]
        for r in range(32):
            blk.append(f"v_sub_f32 v{S+r}, v{S+r}, v{V_MX}")
        blk.append(f"v_sub_f32 v{V_T0}, 0, v{V_M}")
        for r in range(16):
            blk.append(f"v_mov_b32 v{NEGM+r}, v{V_T0}")
        blk.append(f"s_branch {lr}")
        outl.append(blk)

    def store_ctx(emit, blocks, tb_sreg):
        for db in blocks:
            D = OA + 16 * db
            for k in range(8):
                emit(f"v_cvt_pk_bf16_f32 v{D+k}, v{D+2*k}, v{D+2*k+1}")
            emit(f"s_add_u32 s{S_T1}, s{tb_sreg}, {db*2048}")
            for g in range(2):
                emit(f"buffer_store_dwordx4 v[{D+4*g}:{D+4*g+3}], v{V_L16}, s[28:31], s{S_T1} offen offset:{g*1024}")

    def top_hooks():
        lb, lr = a.label("L2_resc"), a.label("L2_rescret")
        a(f"s_cmp_eq_u32 s{S_PEND}, 1")
        a(f"s_cbranch_scc1 {lb}")
        a(f"{lr}:")
        blk = [f"{lb}:", "s_nop 15"]
        for r in range(64):
            blk.append(f"v_mul_f32 v{OA+r}, v{OA+r}, v{V_ALPHA}")
        blk += [f"s_mov_b32 s{S_PEND}, 0", f"s_branch {lr}"]
        outl.append(blk)
        lb, lr = a.label("L2_fin"), a.label("L2_finret")
        a(f"s_cmp_eq_u32 s{S_J}, s{S_N1}")
        a(f"s_cselect_b32 s{S_T0}, s{S_G}, 0")
        a(f"s_cmp_eq_u32 s{S_T0}, 1")
        a(f"s_cbranch_scc1 {lb}")
        a(f"{lr}:")
        blk = [f"{lb}:", "s_nop 15"]
        blk += [f"v_mov_b32 v{V_T0}, v{V_LSAVE}", "s_nop 1", f"v_permlane32_swap_b32 v{V_LSAVE}, v{V_T0}", "s_nop 1",
                f"v_add_f32 v{V_T0}, v{V_LSAVE}, v{V_T0}", f"v_rcp_f32 v{V_T0}, v{V_T0}", "s_nop 0"]
        for r in range(64):
            blk.append(f"v_mul_f32 v{OA+r}, v{OA+r}, v{V_T0}")
        blk += [f"s_lshl_b32 s{S_T0}, s{S_I}, 2", f"s_add_u32 s{S_T0}, s{S_T0}, s{S_WQ}", f"s_lshl_b32 s{S_T0}, s{S_T0}, 18",
                f"s_lshl_b32 s{S_T1}, s{S_HEAD}, 13", f"s_add_u32 s{S_T0}, s{S_T0}, s{S_T1}"]
        store_ctx(blk.append, range(4), S_T0)
        blk.append("s_nop 1")
        for r in range(64):
            blk.append(f"v_mov_b32 v{OA+r}, 0")
        blk.append(f"s_branch {lr}")
        outl.append(blk)

    def dma_set(srd, delta, slots, jpar):
        l1, l2 = a.label("L2_d"), a.label("L2_d")
        ch = []
        c0 = [f"s_add_u32 s{S_T0}, s{S_J}, {delta}",
              f"s_cmp_gt_u32 s{S_T0}, 16",
              f"s_cbranch_scc1 {l2}",
              f"s_cmp_ge_u32 s{S_T0}, s{S_N1}",
              f"s_cbranch_scc1 {l1}",
              f"s_lshl_b32 s{S_T2}, s{S_W}, 11",
              f"s_add_u32 m0, s{S_T2}, {slots[(jpar+delta)&1]}",
              f"s_lshl_b32 s{S_T0}, s{S_T0}, 14",
              f"s_add_u32 s{S_T0}, s{S_T0}, s{S_T2}",
              f"s_add_u32 s{S_T0}, s{S_T0}, s{S_HB}",
              f"buffer_load_dwordx4 v{V_L16}, s[{srd}:{srd+3}], s{S_T0} offen lds",
              f"buffer_load_dwordx4 v{V_L16}, s[{srd}:{srd+3}], s{S_T0} offen offset:1024 lds",
              f"s_branch {l2}",
              f"{l1}:",
              f"s_lshl_b32 s{S_T2}, s{S_W}, 12",
              f"s_add_u32 m0, s{S_T2}, {slots[(jpar+delta)&1]}",
              f"s_lshl_b32 s{S_T0}, s{S_T0}, 1",
              f"s_sub_u32 s{S_T0}, s{S_T0}, s{S_N1}",
              f"s_lshl_b32 s{S_T0}, s{S_T0}, 14",
              f"s_add_u32 s{S_T0}, s{S_T0}, s{S_T2}",
              f"s_add_u32 s{S_T0}, s{S_T0}, s{S_HB}"]
        for q in range(4):
            c0.append(f"buffer_load_dwordx4 v{V_L16}, s[{srd}:{srd+3}], s{S_T0} offen offset:{q*1024} lds")
        c0.append(f"{l2}:")
        return c0

    def set_addr(vreg, delta, slots, jpar):
        return [f"s_add_u32 s{S_T0}, s{S_J}, {delta}",
                f"s_cmp_ge_u32 s{S_T0}, s{S_N1}",
                f"s_cselect_b32 s{S_T0}, s{S_G}, 0",
                f"s_lshl_b32 s{S_T0}, s{S_T0}, 14",
                f"s_add_u32 s{S_T0}, s{S_T0}, {slots[(jpar+delta)&1]}",
                f"v_add_u32 v{vreg}, s{S_T0}, v{V_L16}"]

    D = 6
    def spread(ops, nslots, start=0):
        res = [[] for _ in range(nslots)]
        n = nslots - start
        for k, o in enumerate(ops):
            res[start + min(n - 1, k * n // max(1, len(ops)))].append(o)
        return res

    a(f"s_mov_b32 s{S_J}, -1")
    tile_scalars(1)
    for n in range(D): a(kread(n))
    for n in range(16):
        a(f"s_waitcnt lgkmcnt({min(D-1, 15-n)})")
        a(qk_mfma(n, SB[0]))
        if n + D < 16: a(kread(n + D))
    a("s_barrier")
    a(f"s_mov_b32 s{S_J}, 0")
    for x in dma_set(20, 2, KS, 0): a(x)
    for x in dma_set(24, 1, VS, 0): a(x)
    for x in set_addr(V_KA, 1, KS, 0): a(x)
    for n in range(D): a(kread(n))
    mask_hook(SB[0])
    o0, o1 = max_ops(SB[0])
    a("s_nop 7")
    for o in o0 + o1: a(o)
    slow_hook(SB[0])
    for o in e_ops(SB[0]): a(o)
    st.stamp(3)

    def part_a(p, do_qk):
        Sc, Sn = SB[p], SB[p ^ 1]
        top_hooks()
        for x in set_addr(V_VA, 0, VS, p): a(x)
        ev = spread(e_ops(Sc + 16), 16)
        if not do_qk:
            for n in range(D): a(vread(n))
            for sl in ev:
                for o in sl: a(o)
            return
        for n in range(16):
            a(f"s_waitcnt lgkmcnt({D-1})")
            a(qk_mfma(n, Sn))
            a(kread(n + D) if n + D < 16 else vread(n + D - 16))
            for o in ev[n]: a(o)

    def part_b(p, do_next):
        Sc, Sn = SB[p], SB[p ^ 1]
        if do_next:
            tile_scalars(1)
            lb = a.label("L2_noq")
            a(f"s_add_u32 s{S_T0}, s{S_J}, 2")
            a(f"s_cmp_eq_u32 s{S_T0}, s{S_N1}")
            a(f"s_cselect_b32 s{S_T0}, s{S_G}, 0")
            a(f"s_cmp_eq_u32 s{S_T0}, 0")
            a(f"s_cbranch_scc1 {lb}")
            for ks in range(8):
                a(f"ds_read_b128 v[{QF+4*ks}:{QF+4*ks+3}], v15 offset:{ks*1024}")
            a("s_waitcnt lgkmcnt(0)")
            a(f"{lb}:")
            mask_hook(Sn)
            o0, o1 = max_ops(Sn)
            ee = e_ops(Sn)
        for n in range(16):
            if n <= 10 or not do_next:
                a(f"s_waitcnt lgkmcnt({min(D-1, 15-n)})")
            a(pv_mfma(n, Sc))
            if n + D < 16:
                a(vread(n + D))
            if not do_next:
                continue
            if n == 0:
                for o in o0[:4]: a(o)
            elif n == 1:
                for o in o0[4:]: a(o)
            elif n == 2:
                for o in o1[:5]: a(o)
            elif n == 3:
                for o in o1[5:]: a(o)
                slow_hook(Sn)
            if n == 10:
                a("s_waitcnt vmcnt(0) lgkmcnt(0)")
                a("s_barrier")
                a(f"s_add_u32 s{S_J}, s{S_J}, 1")
                for x in set_addr(V_KA, 1, KS, p ^ 1): a(x)
            if n >= 10:
                a(kread(n - 10))
            if n >= 4:
                k0, k1 = (n - 4) * len(ee) // 12, (n - 3) * len(ee) // 12
                for o in ee[k0:k1]: a(o)
            if n == 11:
                for x in dma_set(20, 2, KS, p ^ 1): a(x)
            if n == 13:
                for x in dma_set(24, 1, VS, p ^ 1): a(x)

    a("L2_loop:")
    part_a(0, True); part_b(0, True)
    part_a(1, True); part_b(1, True)
    a(f"s_cmp_lt_u32 s{S_J}, 16")
    a("s_cbranch_scc1 L2_loop")
    a("s_waitcnt lgkmcnt(0)")
    part_a(0, False); part_b(0, False)
    st.stamp(4)
    a(f"v_add_f32 v{V_LA}, v{V_LA}, v{V_LB}")
    a(f"v_mov_b32 v{V_T0}, v{V_LA}")
    a("s_nop 1")
    a(f"v_permlane32_swap_b32 v{V_LA}, v{V_T0}")
    a("s_nop 1")
    a(f"v_add_f32 v{V_M+1}, v{V_LA}, v{V_T0}")
    a(f"v_mov_b32 v16, v{V_M}")
    a(f"v_mov_b32 v17, v{V_LA}")
    a("s_barrier")
    a(f"v_lshlrev_b32 v18, 3, v{V_LANE}")
    a(f"s_lshl_b32 s{S_T0}, s{S_W}, 9")
    a(f"v_add_u32 v19, s{S_T0}, v18")
    a(f"s_xor_b32 s{S_T0}, s{S_T0}, 2048")
    a(f"v_add_u32 v18, s{S_T0}, v18")
    a("ds_write_b64 v19, v[16:17]")
    a("s_waitcnt lgkmcnt(0)")
    a("s_barrier")
    a("ds_read_b64 v[20:21], v18")
    a("s_waitcnt lgkmcnt(0)")
    a("v_max_f32 v22, v16, v20")
    a("v_sub_f32 v23, v16, v22")
    a("v_sub_f32 v24, v20, v22")
    a("v_exp_f32 v23, v23")
    a("v_exp_f32 v24, v24")
    a("s_nop 0")
    a("v_mul_f32 v25, v17, v23")
    a("v_fmac_f32 v25, v21, v24")
    a("v_rcp_f32 v25, v25")
    a("s_nop 0")
    a("v_mul_f32 v23, v23, v25")
    for r in range(64):
        a(f"v_mul_f32 v{OA+r}, v{OA+r}, v23")
    a(f"s_lshl_b32 s{S_T0}, s{S_W}, 13")
    a(f"s_add_u32 s{S_T0}, s{S_T0}, 8192")
    a(f"v_add_u32 v19, s{S_T0}, v{V_L16}")
    a(f"s_xor_b32 s{S_T1}, s{S_W}, 4")
    a(f"s_lshl_b32 s{S_T1}, s{S_T1}, 13")
    a(f"s_add_u32 s{S_T1}, s{S_T1}, 8192")
    a(f"v_add_u32 v18, s{S_T1}, v{V_L16}")
    a(f"s_sub_u32 s{S_T2}, 15, s{S_I}")
    a(f"s_lshl_b32 s{S_T2}, s{S_T2}, 2")
    a(f"s_add_u32 s{S_T2}, s{S_T2}, s{S_WQ}")
    a(f"s_lshl_b32 s{S_T2}, s{S_T2}, 18")
    a(f"s_lshl_b32 s{S_T1}, s{S_HEAD}, 13")
    a(f"s_add_u32 s{S_T2}, s{S_T2}, s{S_T1}")
    a(f"s_cmp_eq_u32 s{S_G}, 0")
    a("s_cbranch_scc0 L2_mg1")
    for gsel in range(2):
        send = (2, 3) if gsel == 0 else (0, 1)
        keep = (0, 1) if gsel == 0 else (2, 3)
        if gsel == 1: a("L2_mg1:")
        for k in range(8):
            a(f"ds_write_b128 v19, v[{OA+16*send[0]+4*k}:{OA+16*send[0]+4*k+3}] offset:{k*1024}")
        a("s_waitcnt lgkmcnt(0)")
        a("s_barrier")
        for k in range(8):
            a(f"ds_read_b128 v[{96+4*k}:{96+4*k+3}], v18 offset:{k*1024}")
        a("s_waitcnt lgkmcnt(0)")
        for r in range(32):
            a(f"v_add_f32 v{OA+16*keep[0]+r}, v{OA+16*keep[0]+r}, v{96+r}")
        store_ctx(a, keep, S_T2)
        if gsel == 0: a("s_branch L2_fin")
    a("L2_fin:")
    if STAMP:
        a("s_waitcnt vmcnt(0)")
        a(f"s_memtime s[36:37]")
        a("s_waitcnt lgkmcnt(0)")
        a("s_mov_b32 s38, s4"); a("s_mov_b32 s40, s6"); a("s_mov_b32 s42, s8"); a("s_mov_b32 s44, s10"); a("s_mov_b32 s46, s12"); a("s_mov_b32 s48, s36")
        st2 = Stamper(a, 38, 6)
        st2.dump(14, 52, S_W, 16, 1)
    a("L2_end:")
    a("s_endpgm")
    for blk in outl:
        for x in blk: a(x)
    return kernel_desc(name, 256, 102, 256)
```

```python
from gen_common import *

def gen_l3(a):
    name = "mix_kernel"
    kernel_head(a, name)
    st = Stamper(a, 74, 6)
    a("s_cmp_ge_u32 s2, 240")
    a("s_cbranch_scc1 L3_end")
    st.stamp(0)
    a("s_load_dwordx2 s[4:5], s[0:1], 40")
    a("s_load_dwordx4 s[8:11], s[0:1], 56")
    a("s_load_dwordx2 s[12:13], s[0:1], 72")
    a("s_load_dwordx2 s[14:15], s[0:1], 112")
    a("v_and_b32 v1, 63, v0")
    a("v_lshrrev_b32 v2, 6, v0")
    a("s_nop 0")
    a("v_readfirstlane_b32 s40, v2")
    a("v_lshlrev_b32 v2, 4, v1")
    a("s_and_b32 s41, s2, 7")
    a("s_lshl_b32 s52, s40, 10")
    a("v_lshrrev_b32 v6, 4, v1")
    a("v_and_b32 v7, 15, v1")
    a("v_lshrrev_b32 v8, 2, v7")
    a("v_and_b32 v7, 3, v7")
    a("v_xor_b32 v8, v8, v6")
    a("v_lshlrev_b32 v8, 6, v8")
    a("v_lshlrev_b32 v7, 4, v7")
    a("v_add_u32 v8, v8, v7")
    a("s_lshl_b32 s47, s40, 2")
    a("v_add_u32 v6, s47, v6")
    a("v_lshrrev_b32 v9, 2, v1")
    a("v_and_b32 v9, 3, v9")
    a("v_and_b32 v10, 3, v1")
    a("v_lshlrev_b32 v10, 3, v10")
    a("v_lshrrev_b32 v11, 4, v1")
    a("v_and_b32 v11, 1, v11")
    a("v_lshlrev_b32 v11, 5, v11")
    a("v_add_u32 v10, v10, v11")
    a("v_lshrrev_b32 v11, 5, v1")
    a("s_cmp_ge_u32 s2, 112")
    a("s_cbranch_scc1 L3_wo")

    a("s_lshr_b32 s47, s2, 3")
    a("s_and_b32 s42, s47, 1")
    a("s_lshl_b32 s48, s41, 1")
    a("s_add_u32 s42, s42, s48")
    a("s_lshr_b32 s43, s47, 1")
    a("s_lshr_b32 s44, s40, 2")
    a("s_lshr_b32 s45, s40, 1")
    a("s_and_b32 s45, s45, 1")
    a("s_and_b32 s46, s40, 1")
    a("v_lshrrev_b32 v12, 3, v1")
    a("v_and_b32 v13, 7, v1")
    a("v_lshrrev_b32 v14, 1, v12")
    a("s_and_b32 s47, s40, 1")
    a("s_lshl_b32 s47, s47, 2")
    a("v_add_u32 v14, s47, v14")
    a("v_xor_b32 v13, v13, v14")
    a("v_lshlrev_b32 v13, 4, v13")
    a("s_lshl_b32 s47, s40, 3")
    a("v_add_u32 v12, s47, v12")
    a("v_lshlrev_b32 v12, 12, v12")
    a("v_add_u32 v3, v12, v13")
    a("v_mul_u32_u24 v4, 3584, v6")
    a("v_add_u32 v4, v4, v8")
    a("s_lshl_b32 s47, s44, 11")
    a("s_lshl_b32 s48, s46, 13")
    a("s_add_u32 s48, s48, s47")
    a("v_add_u32 v16, s48, v2")
    a("s_lshl_b32 s48, s45, 13")
    a("s_add_u32 s48, s48, s47")
    a("v_add_u32 v19, s48, v2")
    a("v_and_b32 v12, 31, v1")
    a("v_lshrrev_b32 v13, 1, v12")
    a("v_and_b32 v13, 7, v13")
    a("v_xor_b32 v13, v13, v11")
    a("v_lshlrev_b32 v13, 4, v13")
    a("v_lshlrev_b32 v12, 7, v12")
    a("v_add_u32 v12, v12, v13")
    a("s_lshl_b32 s48, s45, 13")
    a("s_add_u32 s48, s48, 16384")
    a("v_add_u32 v12, s48, v12")
    a("s_lshl_b32 s47, s44, 6")
    a("v_xor_b32 v22, s47, v12")
    a("v_xor_b32 v25, 32, v22")
    a("v_lshlrev_b32 v12, 3, v11")
    a("v_add_u32 v12, v12, v9")
    a("s_lshl_b32 s47, s44, 5")
    a("v_add_u32 v12, s47, v12")
    a("v_lshlrev_b32 v12, 8, v12")
    a("v_add_u32 v12, v12, v10")
    a("v_add_u32 v12, 16384, v12")
    a("s_lshl_b32 s47, s46, 1")
    for nb in range(2):
        a(f"s_add_u32 s48, s47, {nb}")
        a("v_xor_b32 v13, s48, v9")
        a("v_lshlrev_b32 v13, 6, v13")
        a(f"v_add_u32 v{28+3*nb}, v12, v13")
    for base in (16, 19, 22, 25, 28, 31):
        a(f"v_add_u32 v{base+1}, 65536, v{base}")
        a(f"v_add_u32 v{base+2}, 131072, v{base}")
    a("s_waitcnt lgkmcnt(0)")
    make_srd(a, 16, 10, 2048 * 2048 * 2)
    make_srd(a, 20, 14, Z2_BYTES, WS_Z2N)
    make_srd(a, 24, 8, 512 * 1792 * 2)
    make_srd(a, 28, 14, 2 * MB, WS_XF)
    make_srd(a, 32, 14, Z2_BYTES, WS_U)
    make_srd(a, 36, 12, 4096)
    a("s_lshl_b32 s50, s42, 19")
    a("s_lshr_b32 s47, s40, 1")
    a("s_lshl_b32 s48, s43, 2")
    a("s_add_u32 s48, s48, s47")
    a("s_lshl_b32 s51, s48, 17")
    a("s_and_b32 s49, s40, 1")
    a("s_lshl_b32 s49, s49, 11")
    a("s_add_u32 s51, s51, s49")
    a("s_lshl_b32 s48, s42, 2")
    a("s_add_u32 s48, s48, s47")
    a("s_lshl_b32 s53, s48, 15")
    a("s_add_u32 s53, s53, s49")
    a("s_lshl_b32 s54, s43, 8")
    a("s_lshl_b32 s55, s40, 11")
    NST = 40
    def dma(u):
        slot = (u % 5) * 32768
        out = []
        if u < 32:
            out.append([f"s_add_u32 m0, s55, {slot}", f"s_add_u32 s60, s51, {u*4096}",
                        "buffer_load_dwordx4 v2, s[20:23], s60 offen lds",
                        "buffer_load_dwordx4 v2, s[20:23], s60 offen offset:1024 lds"])
            for t in range(2):
                out.append([f"s_add_u32 m0, s52, {slot+16384+t*8192}", f"s_add_u32 s60, s50, {t*64*4096 + u*128}",
                            "buffer_load_dwordx4 v3, s[16:19], s60 offen lds"])
        else:
            z = u - 32
            out.append([f"s_add_u32 m0, s55, {slot}", f"s_add_u32 s60, s53, {z*4096}",
                        "buffer_load_dwordx4 v2, s[28:31], s60 offen lds",
                        "buffer_load_dwordx4 v2, s[28:31], s60 offen offset:1024 lds"])
            for t in range(2):
                out.append([f"s_add_u32 m0, s52, {slot+16384+t*8192}", f"s_add_u32 s60, s54, {(z*64+32*t)*3584}",
                            "buffer_load_dwordx4 v4, s[24:27], s60 offen lds"])
        return out
    def sl(u):
        s_ = u % 5
        return s_ // 2, (s_ % 2) * 32768
    def reads(u):
        b, o = sl(u)
        F = 40 + 32 * (u & 1)
        out = []
        for kk in range(2):
            for blk in range(2):
                R = F + 16 * kk + 4 * blk
                if u < 32:
                    out.append(f"ds_read_b128 v[{R}:{R+3}], v{16+b} offset:{o+blk*4096+kk*1024}")
                else:
                    for j in range(2):
                        out.append(f"ds_read_b64_tr_b16 v[{R+2*j}:{R+2*j+1}], v{28+3*blk+b} offset:{o+(16*kk+4*j)*256}")
            for blk in range(2):
                R = F + 16 * kk + 8 + 4 * blk
                if u < 32:
                    out.append(f"ds_read_b128 v[{R}:{R+3}], v{22+3*kk+b} offset:{o+blk*4096}")
                else:
                    out.append(f"ds_read_b128 v[{R}:{R+3}], v{19+b} offset:{o+blk*4096+kk*1024}")
        return out
    for u in range(5):
        for th in dma(u):
            for x in th: a(x)
    a("v_and_b32 v12, 31, v1")
    a("v_lshlrev_b32 v12, 1, v12")
    a("s_lshl_b32 s47, s42, 8")
    a("s_lshl_b32 s48, s45, 7")
    a("s_add_u32 s47, s47, s48")
    a("s_lshl_b32 s48, s44, 6")
    a("s_add_u32 s47, s47, s48")
    a("buffer_load_ushort v34, v12, s[36:39], s47 offen")
    a("s_waitcnt vmcnt(17)")
    a("s_barrier")
    st.stamp(1)
    for r in reads(0): a(r)
    for u in range(NST):
        F = 40 + 32 * (u & 1)
        a("s_waitcnt lgkmcnt(0)")
        nx, dm = [], []
        if u < NST - 1:
            rem = min(u + 4, NST - 1) - (u + 1)
            extra = 1 if u == 0 else 0
            if u <= 3: extra = 1
            a(f"s_waitcnt vmcnt({rem*4 + (extra if u+1 <= 4 else 0)})")
            a("s_barrier")
            nx = reads(u + 1)
            if u + 5 < NST:
                dm = dma(u + 5)
        mf = []
        accb = 128 if u < 32 else 192
        for kk in range(2):
            for fb_ in range(2):
                for tb_ in range(2):
                    acc = accb + (fb_ * 2 + tb_) * 16
                    C = "0" if (u in (0, 32) and kk == 0) else f"v[{acc}:{acc+15}]"
                    A = F + 16 * kk + 4 * fb_
                    B = F + 16 * kk + 8 + 4 * tb_
                    mf.append(f"{MFMA} v[{acc}:{acc+15}], v[{A}:{A+3}], v[{B}:{B+3}], {C}")
        per = -(-len(nx) // 8)
        for i in range(8):
            a(mf[i])
            for r in nx[i*per:(i+1)*per]: a(r)
            if i % 2 == 1 and dm:
                for x in dm.pop(0): a(x)
    st.stamp(2)
    a("s_barrier")
    a("s_lshl_b32 s47, s40, 14")
    a("v_add_u32 v12, s47, v2")
    a("s_xor_b32 s47, s47, 65536")
    a("v_add_u32 v13, s47, v2")
    a(f"s_mov_b32 s47, {f32bits(GELU_C1)}")
    a(f"v_mov_b32 v35, {f32bits(GELU_C0)}")
    a("v_lshlrev_b32 v34, 16, v34")
    a("s_lshl_b32 s48, s42, 2")
    a("s_lshl_b32 s49, s45, 1")
    a("s_add_u32 s48, s48, s49")
    a("s_add_u32 s48, s48, s44")
    a("s_mul_i32 s48, s48, 57344")
    a("s_lshl_b32 s49, s43, 13")
    a("s_add_u32 s48, s48, s49")
    a("s_lshl_b32 s49, s46, 12")
    a("s_add_u32 s48, s48, s49")
    a("s_nop 7")
    a("s_cmp_eq_u32 s44, 0")
    a("s_cbranch_scc0 L3_sg1")
    for g in range(2):
        if g == 1: a("L3_sg1:")
        k = 0
        for accb in (128, 192):
            for fb_ in range(2):
                acc = accb + (fb_ * 2 + (1 - g)) * 16
                for q in range(4):
                    a(f"ds_write_b128 v12, v[{acc+4*q}:{acc+4*q+3}] offset:{k*1024}"); k += 1
        a("s_waitcnt lgkmcnt(0)")
        a("s_barrier")
        for k in range(16):
            a(f"ds_read_b128 v[{40+4*k}:{40+4*k+3}], v13 offset:{k*1024}")
            if k == 7: a("s_waitcnt lgkmcnt(4)")
        a("s_waitcnt lgkmcnt(0)")
        k = 0
        for accb in (128, 192):
            for fb_ in range(2):
                acc = accb + (fb_ * 2 + g) * 16
                for r in range(16):
                    a(f"v_add_f32 v{acc+r}, v{acc+r}, v{40+16*k+r}")
                k += 1
        for fb_ in range(2):
            z = 192 + (fb_ * 2 + g) * 16
            G = 128 + (fb_ * 2 + g) * 16
            emit_gelu(a, list(range(z, z + 16)), 40, 35, 47)
            for r in range(16):
                a(f"v_add_f32 v{G+r}, v{G+r}, v34")
            for r in range(16):
                a(f"v_mul_f32 v{G+r}, v{G+r}, v{z+r}")
            for j in range(8):
                a(f"v_cvt_pk_bf16_f32 v{G+j}, v{G+2*j}, v{G+2*j+1}")
            for gr in range(2):
                a(f"buffer_store_dwordx4 v[{G+4*gr}:{G+4*gr+3}], v2, s[32:35], s48 offen offset:{fb_*2048+gr*1024}")
        a("s_branch L3_fin")

    a("L3_wo:")
    a("s_sub_u32 s47, s2, 112")
    a("s_lshr_b32 s47, s47, 3")
    a("s_and_b32 s43, s47, 3")
    a("s_lshr_b32 s42, s47, 2")
    a("s_and_b32 s48, s41, 1")
    a("s_lshl_b32 s48, s48, 2")
    a("s_add_u32 s42, s42, s48")
    a("s_lshr_b32 s44, s41, 1")
    a("s_lshr_b32 s45, s40, 1")
    a("s_and_b32 s46, s40, 1")
    a("v_lshlrev_b32 v4, 10, v6")
    a("v_add_u32 v4, v4, v8")
    a("s_lshl_b32 s47, s45, 13")
    a("v_add_u32 v16, s47, v2")
    a("v_lshlrev_b32 v12, 2, v11")
    a("v_add_u32 v12, v12, v9")
    a("v_lshlrev_b32 v12, 8, v12")
    a("v_add_u32 v12, v12, v10")
    a("v_add_u32 v12, 32768, v12")
    a("s_lshl_b32 s47, s46, 1")
    for nb in range(2):
        a(f"s_add_u32 s48, s47, {nb}")
        a("v_xor_b32 v13, s48, v9")
        a("v_lshlrev_b32 v13, 6, v13")
        a(f"v_add_u32 v{19+3*nb}, v12, v13")
    for base in (16, 19, 22):
        a(f"v_add_u32 v{base+1}, 49152, v{base}")
        a(f"v_add_u32 v{base+2}, 98304, v{base}")
    a("s_waitcnt lgkmcnt(0)")
    make_srd(a, 16, 4, 4096 * 512 * 2)
    make_srd(a, 20, 14, 16 * MB, WS_CTX)
    make_srd(a, 24, 14, 16 * MB, WS_PART)
    a("s_lshl_b32 s47, s42, 3")
    a("s_add_u32 s47, s47, s40")
    a("s_lshl_b32 s50, s47, 18")
    a("s_lshl_b32 s47, s44, 16")
    a("s_add_u32 s50, s50, s47")
    a("s_lshl_b32 s51, s44, 20")
    a("s_lshl_b32 s47, s43, 8")
    a("s_add_u32 s51, s51, s47")
    a("s_lshl_b32 s55, s40, 12")
    def dmaw(s):
        slot = (s % 3) * 49152
        out = [[f"s_add_u32 m0, s55, {slot}", f"s_add_u32 s60, s50, {s*4096}"] +
               [f"buffer_load_dwordx4 v2, s[20:23], s60 offen offset:{q*1024} lds" for q in range(2)],
               [f"s_add_u32 m0, s55, {slot}", f"s_add_u32 s60, s50, {s*4096}"] +
               [f"buffer_load_dwordx4 v2, s[20:23], s60 offen offset:{q*1024} lds" for q in range(2, 4)]]
        for t in range(2):
            out.append([f"s_add_u32 m0, s52, {slot+32768+t*8192}", f"s_add_u32 s60, s51, {(s*64+32*t)*1024}",
                        "buffer_load_dwordx4 v4, s[16:19], s60 offen lds"])
        return out
    def readsw(gk):
        s, ks = gk // 4, gk % 4
        b = s % 3
        F = 40 + 16 * (gk & 1)
        out = []
        for nb in range(2):
            for j in range(2):
                out.append(f"ds_read_b64_tr_b16 v[{F+4*nb+2*j}:{F+4*nb+2*j+1}], v{19+3*nb+b} offset:{(16*ks+8*j)*256}")
        for tb_ in range(2):
            out.append(f"ds_read_b128 v[{F+8+4*tb_}:{F+8+4*tb_+3}], v{16+b} offset:{tb_*4096+ks*1024}")
        return [out[0], out[1], out[4], out[5], out[2], out[3]]
    for s in range(3):
        for th in dmaw(s):
            for x in th: a(x)
    a("s_waitcnt vmcnt(12)")
    a("s_barrier")
    st.stamp(1)
    for r in readsw(0): a(r)
    dm = []
    for gk in range(64):
        s, ks = gk // 4, gk % 4
        F = 40 + 16 * (gk & 1)
        a("s_waitcnt lgkmcnt(0)")
        if ks == 3 and s < 15:
            a(f"s_waitcnt vmcnt({6 if s < 14 else 0})")
            a("s_barrier")
            if s + 3 < 16: dm = dmaw(s + 3)
        nx = readsw(gk + 1) if gk < 63 else []
        i = 0
        for nb in range(2):
            for tb_ in range(2):
                acc = 128 + (nb * 2 + tb_) * 16
                C = "0" if gk == 0 else f"v[{acc}:{acc+15}]"
                a(f"{MFMA} v[{acc}:{acc+15}], v[{F+4*nb}:{F+4*nb+3}], v[{F+8+4*tb_}:{F+8+4*tb_+3}], {C}")
                for r in nx[2*i:2*i+2]: a(r)
                if i % 2 == 1 and dm:
                    for x in dm.pop(0): a(x)
                i += 1
    st.stamp(2)
    a("s_lshl_b32 s47, s44, 22")
    a("s_lshl_b32 s48, s42, 3")
    a("s_lshl_b32 s49, s45, 1")
    a("s_add_u32 s48, s48, s49")
    a("s_lshl_b32 s48, s48, 16")
    a("s_add_u32 s47, s47, s48")
    a("s_lshl_b32 s48, s43, 2")
    a("s_lshl_b32 s49, s46, 1")
    a("s_add_u32 s48, s48, s49")
    a("s_lshl_b32 s48, s48, 12")
    a("s_add_u32 s47, s47, s48")
    a("s_nop 7")
    for nb in range(2):
        for tb_ in range(2):
            acc = 128 + (nb * 2 + tb_) * 16
            a(f"s_add_u32 s60, s47, {tb_*65536 + nb*4096}")
            for q in range(4):
                a(f"buffer_store_dwordx4 v[{acc+4*q}:{acc+4*q+3}], v2, s[24:27], s60 offen offset:{q*1024}")
    a("L3_fin:")
    st.stamp(3)
    if STAMP: a("s_waitcnt vmcnt(0)")
    st.stamp(4)
    st.stamp(5)
    st.dump(14, 68, 40, 36, 2)
    a("L3_end:")
    a("s_endpgm")
    return kernel_desc(name, 256, 96, 256)
```

```python
from gen_common import *

def gen_l4(a):
    name = "outp_kernel"
    kernel_head(a, name)
    st = Stamper(a, 74, 4)
    a("s_cmp_ge_u32 s2, 256")
    a("s_cbranch_scc1 L4_end")
    st.stamp(0)
    a("s_load_dwordx2 s[4:5], s[0:1], 80")
    a("s_load_dwordx2 s[6:7], s[0:1], 96")
    a("s_load_dwordx2 s[14:15], s[0:1], 112")
    a("v_and_b32 v1, 63, v0")
    a("v_lshrrev_b32 v2, 6, v0")
    a("s_nop 0")
    a("v_readfirstlane_b32 s40, v2")
    a("v_lshlrev_b32 v2, 4, v1")
    a("s_and_b32 s41, s2, 7")
    a("s_lshr_b32 s47, s2, 3")
    a("s_and_b32 s43, s47, 7")
    a("s_lshr_b32 s42, s47, 3")
    a("s_lshl_b32 s48, s41, 2")
    a("s_add_u32 s42, s42, s48")
    a("s_lshr_b32 s45, s40, 1")
    a("s_and_b32 s46, s40, 1")
    a("v_lshrrev_b32 v3, 3, v1")
    a("v_and_b32 v4, 7, v1")
    a("v_lshrrev_b32 v5, 2, v4")
    a("v_and_b32 v4, 3, v4")
    a("v_lshrrev_b32 v6, 1, v3")
    a("v_and_b32 v6, 1, v6")
    a("v_xor_b32 v5, v5, v6")
    a("v_lshlrev_b32 v5, 6, v5")
    a("v_lshlrev_b32 v4, 4, v4")
    a("v_add_u32 v5, v5, v4")
    a("s_lshl_b32 s47, s40, 3")
    a("v_add_u32 v3, s47, v3")
    a("v_lshlrev_b32 v3, 10, v3")
    a("v_add_u32 v3, v3, v5")
    a("v_lshrrev_b32 v4, 2, v1")
    a("v_and_b32 v4, 3, v4")
    a("v_and_b32 v5, 3, v1")
    a("v_lshlrev_b32 v5, 3, v5")
    a("v_lshrrev_b32 v6, 4, v1")
    a("v_and_b32 v6, 1, v6")
    a("v_lshlrev_b32 v6, 5, v6")
    a("v_add_u32 v5, v5, v6")
    a("v_lshrrev_b32 v6, 5, v1")
    a("v_lshlrev_b32 v6, 2, v6")
    a("v_add_u32 v6, v6, v4")
    a("v_lshlrev_b32 v6, 7, v6")
    a("v_add_u32 v5, v5, v6")
    a("v_lshrrev_b32 v4, 1, v4")
    a("v_xor_b32 v4, s46, v4")
    a("v_lshlrev_b32 v4, 6, v4")
    a("v_add_u32 v4, v4, v5")
    a("v_add_u32 v5, 57344, v4")
    a("s_waitcnt lgkmcnt(0)")
    make_srd(a, 16, 4, 896 * 512 * 2)
    make_srd(a, 20, 14, Z2_BYTES, WS_U)
    make_srd(a, 24, 14, 16 * MB, WS_PART)
    make_srd(a, 28, 14, 8192, WS_GATE)
    make_srd(a, 32, 6, 2048 * 512 * 2)
    a("s_lshl_b32 s50, s43, 7")
    a("s_lshl_b32 s52, s40, 10")
    a("s_lshl_b32 s47, s42, 1")
    a("s_add_u32 s47, s47, s45")
    a("s_mul_i32 s51, s47, 57344")
    for c in range(14):
        for t2 in range(2):
            t = c * 2 + t2
            a(f"s_add_u32 m0, s52, {t*4096}")
            a(f"s_add_u32 s60, s50, {t*32*1024}")
            a("buffer_load_dwordx4 v3, s[16:19], s60 offen lds")
        a(f"s_add_u32 s60, s51, {c*4096}")
        for q in range(4):
            ks = c * 4 + q
            a(f"buffer_load_dwordx4 v[{32+4*ks}:{32+4*ks+3}], v2, s[20:23], s60 offen offset:{q*1024}")
    a("v_and_b32 v6, 31, v1")
    a("v_lshlrev_b32 v7, 2, v6")
    a("s_lshl_b32 s48, s47, 7")
    a("buffer_load_dword v7, v7, s[28:31], s48 offen")
    a("s_waitcnt vmcnt(0)")
    a("s_barrier")
    st.stamp(1)
    a("s_lshl_b32 s53, s47, 16")
    a("s_lshl_b32 s48, s43, 1")
    a("s_add_u32 s48, s48, s46")
    a("s_lshl_b32 s48, s48, 12")
    a("s_add_u32 s53, s53, s48")
    def rd(ks):
        F = 24 + 4 * (ks & 1)
        base, off = (4, ks * 2048) if ks < 28 else (5, (ks - 28) * 2048)
        return [f"ds_read_b64_tr_b16 v[{F+2*j}:{F+2*j+1}], v{base} offset:{off+j*1024}" for j in range(2)]
    for r in rd(0): a(r)
    for ks in range(56):
        F = 24 + 4 * (ks & 1)
        a("s_waitcnt lgkmcnt(0)")
        if ks < 55:
            for r in rd(ks + 1): a(r)
        C = "0" if ks == 0 else "v[8:23]"
        a(f"{MFMA} v[8:23], v[{F}:{F+3}], v[{32+4*ks}:{32+4*ks+3}], {C}")
        if ks in (17, 21, 25, 29):
            p = (ks - 17) // 4
            a(f"s_add_u32 s60, s53, {p << 22}")
            for q in range(4):
                a(f"buffer_load_dwordx4 v[{32+16*p+4*q}:{32+16*p+4*q+3}], v2, s[24:27], s60 offen offset:{q*1024}")
    a("s_waitcnt vmcnt(0)")
    for r in range(16):
        a(f"v_add_f32 v{32+r}, v{32+r}, v{48+r}")
        a(f"v_add_f32 v{64+r}, v{64+r}, v{80+r}")
    for r in range(16):
        a(f"v_add_f32 v{32+r}, v{32+r}, v{64+r}")
    for r in range(16):
        a(f"v_sub_f32 v{32+r}, v{32+r}, v{8+r}")
    for r in range(16):
        a(f"v_fma_f32 v{8+r}, v7, v{32+r}, v{8+r}")
    for j in range(8):
        a(f"v_cvt_pk_bf16_f32 v{8+j}, v{8+2*j}, v{8+2*j+1}")
    a("v_lshlrev_b32 v6, 10, v6")
    a("v_lshrrev_b32 v24, 5, v1")
    a("v_lshlrev_b32 v24, 4, v24")
    a("v_add_u32 v6, v6, v24")
    for g in range(2):
        a(f"v_permlane32_swap_b32 v{8+4*g}, v{8+4*g+2}")
        a(f"v_permlane32_swap_b32 v{8+4*g+1}, v{8+4*g+3}")
    a("s_lshl_b32 s48, s47, 15")
    a("s_add_u32 s48, s48, s50")
    a("s_lshl_b32 s49, s46, 6")
    a("s_add_u32 s48, s48, s49")
    for g in range(2):
        a(f"buffer_store_dwordx4 v[{8+4*g}:{8+4*g+3}], v6, s[32:35], s48 offen offset:{g*32}")
    st.stamp(2)
    if STAMP: a("s_waitcnt vmcnt(0)")
    st.stamp(3)
    st.dump(14, 68, 40, 36, 3)
    a("L4_end:")
    a("s_endpgm")
    return kernel_desc(name, 256, 96, 256)
```

```python
import sys
from gen_common import *
from gen_l1 import gen_l1

HEADER = open("gated_mix__compressed_kv_cla__mixer_gmlp__prompt.s.ref").read().split("; Override")[0]

def build(which=("l1",)):
    a = Asm()
    descs = []
    launches = []
    if "l1" in which:
        descs.append(gen_l1(a)); launches.append("; @launch kernel=proj_kernel grid=(256,1,1) block=(512,1,1) lds=163840")
    if "l2" in which:
        from gen_l2 import gen_l2
        descs.append(gen_l2(a)); launches.append("; @launch kernel=attn_kernel grid=(256,1,1) block=(512,1,1) lds=163840")
    if "l3" in which:
        from gen_l3 import gen_l3
        descs.append(gen_l3(a)); launches.append("; @launch kernel=mix_kernel grid=(240,1,1) block=(512,1,1) lds=163840")
    if "l4" in which:
        from gen_l4 import gen_l4
        descs.append(gen_l4(a)); launches.append("; @launch kernel=outp_kernel grid=(256,1,1) block=(256,1,1) lds=114688")
    txt = HEADER + "\n".join(launches) + "\n" + '.amdgcn_target "amdgcn-amd-amdhsa--gfx950"\n.text\n' + a.text() + '.section .rodata,"a"\n' + "".join(descs)
    return txt

if __name__ == "__main__":
    which = sys.argv[2].split(",") if len(sys.argv) > 2 else ("l1", "l2", "l3", "l4")
    open(sys.argv[1], "w").write(build(which))
```
